```python
import torch

def _softmax(x, axis=-1):
    return torch.softmax(x, dim=axis)
def _gelu(x):
    return torch.nn.functional.gelu(x, approximate="tanh")
def _silu(x):
    return torch.nn.functional.silu(x)
def _sigmoid(x):
    return torch.sigmoid(x)
def _layernorm(x, axis=-1, eps=1e-5):
    m = x.mean(dim=axis, keepdim=True)
    v = x.var(dim=axis, keepdim=True, unbiased=False)
    return (x - m) / torch.sqrt(v + eps)
def _scatter_add(tgt, idx, src, axis=0):
    return tgt.clone().index_add_(axis, idx, src)
def _segment_sum(src, seg, n):
    out = torch.zeros((n,) + src.shape[1:], dtype=src.dtype)
    return out.index_add_(0, seg, src)
def _pad(x, pw):
    flat = tuple(v for pair in reversed(pw) for v in pair)
    return torch.nn.functional.pad(x, flat)

kernel_name = 'standalone__deep_cross_xdeepfm__recsys'

def setup_inputs():

    _w = (lambda a: (lambda t: t.to(torch.bfloat16) if t.is_floating_point() else t)(torch.as_tensor(a)))
    B, F, D, L = 1024, 26, 32, 3
    V = min(100000, 100000)
    Din = F * D
    return {
        "idx": _w((lambda lo, hi, *s: torch.randint(lo, hi, s))(0, V, B, F).to(torch.int64)),
        "table": _w((lambda *s: torch.randn(*s, dtype=torch.bfloat16) * 1.6)(V, D)),
        "ws_cin": _w((lambda *s: torch.randn(*s, dtype=torch.bfloat16) * 0.1)(L, F, F, F) * (1.0 / F)),
        "w_cin_out": _w((lambda *s: torch.randn(*s, dtype=torch.bfloat16) * 0.1)(L * F) * ((L * F) ** -0.5)),
        "w_dnn1": _w((lambda *s: torch.randn(*s, dtype=torch.bfloat16) * 1.6)(Din, Din) * (Din ** -0.5)),
        "b_dnn1": _w((lambda *s: torch.randn(*s, dtype=torch.bfloat16) * 12.8)(Din) * 0.1),
        "w_dnn2": _w((lambda *s: torch.randn(*s, dtype=torch.bfloat16) * 0.05)(Din) * (Din ** -0.5)),
        "b_out": _w((lambda *s: torch.randn(*s, dtype=torch.bfloat16) * 1.6)(1)),
    }

def reference(idx, table, ws_cin, w_cin_out, w_dnn1, b_dnn1, w_dnn2, b_out):
    x0 = table[idx]
    B = x0.shape[0]
    L = ws_cin.shape[0]
    xk = x0
    pooled = []
    for l in range(L):
        xk = torch.einsum('bid,bjd,hij->bhd', xk, x0, ws_cin[l])
        pooled.append(xk.sum(axis=-1))
    p_plus = torch.stack(pooled, axis=1).reshape(B, -1)
    logit_cin = p_plus @ w_cin_out
    h = x0.reshape(B, -1)
    h = _gelu(h @ w_dnn1 + b_dnn1)
    logit_dnn = h @ w_dnn2
    return logit_cin + logit_dnn + b_out
```

```python
import re
K = 'standalone__deep_cross_xdeepfm__recsys_kernel'

def regs(tok):
    tok = tok.strip()
    out = set()
    m = re.fullmatch(r'-?\|?([vs])(\d+)\|?', tok)
    if m: out.add((m.group(1), int(m.group(2)))); return out
    m = re.fullmatch(r'-?([vs])\[(\d+):(\d+)\]', tok)
    if m:
        for i in range(int(m.group(2)), int(m.group(3)) + 1): out.add((m.group(1), i))
        return out
    if tok == 'vcc': return {('s', 106), ('s', 107)}
    if tok == 'vcc_lo': return {('s', 106)}
    if tok == 'vcc_hi': return {('s', 107)}
    if tok == 'exec': return {('s', 126), ('s', 127)}
    if tok == 'exec_lo': return {('s', 126)}
    if tok == 'exec_hi': return {('s', 127)}
    if tok == 'm0': return {('s', 124)}
    return out

TRANS = ('v_exp_f32', 'v_rcp_f32', 'v_log_f32', 'v_rsq_f32', 'v_sqrt_f32')

class Ins:
    def __init__(self, text):
        self.text = text
        t = text.split(';')[0].strip()
        self.label = t.endswith(':')
        parts = t.split(None, 1)
        self.op = parts[0] if parts else ''
        rest = parts[1] if len(parts) > 1 else ''
        ops = [x.strip() for x in re.split(r',(?![^\[]*\])', rest)] if rest else []
        self.mods = ''
        if ops:
            sp = ops[-1].split(None, 1)
            if len(sp) > 1: ops[-1] = sp[0]; self.mods = sp[1]
        self.ops = ops
        op = self.op
        self.valu = op.startswith('v_')
        self.mfma = op.startswith('v_mfma')
        self.dot = op.startswith('v_dot')
        self.trans = any(op.startswith(x) for x in TRANS)
        self.vmem = op.startswith(('buffer_', 'global_', 'flat_'))
        self.ds = op.startswith('ds_')
        self.smem = op.startswith(('s_load', 's_memtime', 's_memrealtime', 's_buffer_load'))
        self.salu = op.startswith('s_') and not self.smem
        self.dpp = 'row_' in self.mods or 'quad_perm' in self.mods or 'wave_' in self.mods
        self.perm = op.startswith('v_permlane')
        self.rdlane = op.startswith(('v_readlane', 'v_readfirstlane'))
        self.wrlane = op.startswith('v_writelane')
        self.w = set(); self.r = set()
        R = [regs(o) for o in ops]
        allr = set().union(*R) if R else set()
        self.srcc = set()
        if self.valu:
            if op.startswith('v_cmp'):
                self.w = R[0]; self.r = set().union(*R[1:])
                if op.startswith('v_cmpx'): self.w |= regs('exec')
            elif self.perm and 'swap' in op:
                self.w = R[0] | R[1]; self.r = R[0] | R[1]
            elif op.startswith(('v_add_co', 'v_sub_co', 'v_addc_co', 'v_subb_co')):
                self.w = R[0] | R[1]; self.r = set().union(*R[2:])
            else:
                self.w = R[0]; self.r = set().union(*R[1:]) if len(R) > 1 else set()
                if op.startswith(('v_fmac', 'v_mac', 'v_writelane', 'v_dot2c', 'v_pk_fmac')) or self.dpp: self.r |= R[0]
                if op.startswith('v_cndmask') and len(ops) == 3: self.r |= regs('vcc')
            if self.mfma: self.srcc = R[3]
        elif self.vmem:
            lds = ' lds' in (' ' + self.mods) or '_lds_' in op
            self.lds = lds
            if 'store' in op or ('atomic' in op):
                self.r = allr
                self.stdata = R[0] if op.startswith('buffer') else R[1]
            elif lds:
                self.r = allr | regs('m0')
            else:
                self.w = R[0]; self.r = set().union(*R[1:])
                if 'd16' in op: self.r |= R[0]
        elif self.ds:
            if op.startswith(('ds_read', 'ds_bpermute', 'ds_permute', 'ds_swizzle')) or '_rtn' in op:
                self.w = R[0]; self.r = set().union(*R[1:])
            else: self.r = allr
        elif self.smem:
            self.w = R[0]; self.r = set().union(*R[1:]) if len(R) > 1 else set()
        elif self.salu:
            if op.startswith(('s_cmp', 's_cbranch', 's_branch', 's_waitcnt', 's_nop', 's_barrier', 's_endpgm', 's_setprio', 's_bitcmp', 's_sleep')):
                self.r = allr
            else:
                self.w = R[0] if R else set(); self.r = set().union(*R[1:]) if len(R) > 1 else set()
                if 'saveexec' in op: self.w |= regs('exec')
        self.passes = 0
        if self.mfma: self.passes = 8 if '32x32x16' in op else 4
        self.states = 1
        if op == 's_nop': self.states = int(ops[0]) + 1
        if self.label or op == '' or op.startswith('.'): self.states = 0

def V(s): return {x for x in s if x[0] == 'v'}
def S(s): return {x for x in s if x[0] == 's'}

def need(p, c):
    n = 0
    pv, cv_r, cv_w = V(p.w), V(c.r), V(c.w)
    if p.valu and not p.mfma:
        ps = S(p.w)
        if ps & S(c.r):
            if c.vmem: n = max(n, 5)
            if c.valu: n = max(n, 2)
            if (c.rdlane or c.wrlane): n = max(n, 4)
        if ps & regs('exec'):
            if c.dpp: n = max(n, 5)
            if c.rdlane or c.wrlane or c.perm or c.mfma: n = max(n, 4)
        if ps & (regs('vcc') | regs('exec')) and c.op.startswith('s_cbranch_') and ('vcc' in c.op or 'exec' in c.op): n = max(n, 1)
        if pv & cv_r:
            if c.dpp or c.perm: n = max(n, 2)
            if c.rdlane: n = max(n, 1)
            if c.mfma: n = max(n, 2)
            if p.trans and c.valu: n = max(n, 1)
            if ('op_sel' in p.mods and not p.op.startswith('v_pk_')) or 'sel:' in p.mods and 'sdwa' in p.op: n = max(n, 1)
        if p.dot and (pv & (cv_r | cv_w)):
            if c.op == p.op and c.valu and len(c.ops) == 4 and (pv & regs(c.ops[3])) and not (pv & (regs(c.ops[1]) | regs(c.ops[2]))): pass
            else: n = max(n, 3)
    if p.mfma:
        big = 12 if p.passes == 8 else 8
        if c.mfma:
            if pv & (regs(c.ops[1]) | regs(c.ops[2])): n = max(n, big)
            if pv & c.srcc:
                if not (pv == c.srcc and p.passes == c.passes): n = max(n, big - 2)
            elif pv & cv_w: n = max(n, big)
        else:
            if pv & (cv_r | cv_w): n = max(n, big)
            if c.valu and (V(p.srcc) & cv_w): n = max(n, 7 if p.passes == 8 else 3)
    if p.salu and ('s', 124) in p.w and c.vmem and getattr(c, 'lds', False): n = max(n, 1)
    if p.vmem and hasattr(p, 'stdata') and len(p.stdata) >= 3 and (p.stdata & cv_w): n = max(n, 2)
    return n

class Asm:
    def __init__(self):
        self.L = []
    def __call__(self, text):
        for line in text.strip('\n').split('\n'):
            line = line.strip()
            if line: self.L.append(line)
    def c(self, text): self.L.append('; ' + text)
    def finish(self):
        out = []; hist = []
        nn = 0
        for line in self.L:
            if line.startswith(';'): out.append('    ' + line); continue
            ins = Ins(line)
            if ins.states == 0:
                out.append(line); continue
            dist = 0; req = 0
            for p in reversed(hist):
                r = need(p, ins) - dist
                if r > req: req = r
                dist += p.states
                if dist > 20: break
            while req > 0:
                k = min(req, 8)
                nop = Ins('s_nop %d' % (k - 1)); hist.append(nop); out.append('    s_nop %d' % (k - 1)); req -= k; nn += 1
            hist.append(ins); out.append('    ' + line)
            if ins.op in ('s_branch', 's_endpgm'): hist = []
        self.nnops = nn
        return '\n'.join(out)

def wrap(body, launch, vgpr=256, sgpr=102, header=''):
    return (header + '; @launch %s\n' % launch +
        '.amdgcn_target "amdgcn-amd-amdhsa--gfx950"\n.text\n.globl %s\n.p2align 8\n.type %s,@function\n%s:\n' % (K, K, K) +
        body + '\n.section .rodata,"a"\n.p2align 6\n.amdhsa_kernel %s\n' % K +
        '  .amdhsa_next_free_vgpr %d\n  .amdhsa_next_free_sgpr %d\n  .amdhsa_accum_offset %d\n' % (vgpr, sgpr, vgpr) +
        '  .amdhsa_group_segment_fixed_size 0\n  .amdhsa_kernarg_size 88\n  .amdhsa_user_sgpr_count 2\n'
        '  .amdhsa_user_sgpr_kernarg_segment_ptr 1\n  .amdhsa_system_sgpr_workgroup_id_x 1\n.end_amdhsa_kernel\n')
```

```python
from asmlib import *
import sys
NW = 4
NWG = int(sys.argv[2]); NI = int(sys.argv[3]); pol = sys.argv[4].replace('+', ' ') if len(sys.argv) > 4 else ''
a = Asm()
a('s_cmp_ge_u32 s2, %d\ns_cbranch_scc1 L_end' % NWG)
a('s_memrealtime s[64:65]\ns_memtime s[66:67]')
a('s_load_dwordx2 s[40:41], s[0:1], 80\ns_load_dwordx2 s[32:33], s[0:1], 8')
a('v_lshrrev_b32 v2, 6, v0\nv_and_b32 v1, 63, v0\nv_readfirstlane_b32 s3, v2')
a('s_mov_b32 s34, 6400000\ns_mov_b32 s35, 0x20000\ns_mov_b32 s42, 0x200000\ns_mov_b32 s43, 0x20000')
a('s_lshl_b32 s4, s2, 2\ns_add_u32 s4, s4, s3\ns_mul_i32 s4, s4, %d' % (NI * 64))
for i in range(NI):
    a('v_add_u32 v%d, s4, v1\nv_add_u32 v%d, %d, v%d\nv_mul_u32_u24 v%d, 641, v%d\nv_and_b32 v%d, 0x7fff, v%d\nv_lshlrev_b32 v%d, 7, v%d' % ((8 + i, 8 + i, 64 * i) + (8 + i,) * 7))
a('s_waitcnt lgkmcnt(0)')
a('s_memtime s[68:69]')
for i in range(NI): a('buffer_load_dword v%d, v%d, s[32:35], 0 offen %s' % (48 + i, 8 + i, pol))
a('s_memtime s[70:71]\ns_waitcnt vmcnt(0)\ns_memtime s[72:73]\ns_memrealtime s[74:75]')
NS = 6
a('s_waitcnt lgkmcnt(0)')
a('s_mul_i32 s4, s2, %d\ns_add_u32 s3, s3, s4\ns_mul_i32 s3, s3, %d' % (NW, NS * 8))
a('s_add_u32 s3, s3, 0x100000\nv_mov_b32 v1, 0\ns_mov_b64 exec, 1')
for i in range(NS):
    a('v_mov_b32 v2, s%d\nv_mov_b32 v3, s%d\nbuffer_store_dwordx2 v[2:3], v1, s[40:43], s3 offen offset:%d\ns_nop 1' % (64 + 2 * i, 65 + 2 * i, 8 * i))
a('L_end:\ns_endpgm')
open(sys.argv[1], 'w').write(wrap(a.finish(), 'grid=(256,1,1) block=(%d,1,1) lds=131072' % (64 * NW), vgpr=160))
```
